```python
import torch

def _softmax(x, axis=-1):
    return torch.softmax(x, dim=axis)
def _gelu(x):
    return torch.nn.functional.gelu(x, approximate="tanh")
def _silu(x):
    return torch.nn.functional.silu(x)
def _sigmoid(x):
    return torch.sigmoid(x)
def _layernorm(x, axis=-1, eps=1e-5):
    m = x.mean(dim=axis, keepdim=True)
    v = x.var(dim=axis, keepdim=True, unbiased=False)
    return (x - m) / torch.sqrt(v + eps)
def _scatter_add(tgt, idx, src, axis=0):
    return tgt.clone().index_add_(axis, idx, src)
def _segment_sum(src, seg, n):
    out = torch.zeros((n,) + src.shape[1:], dtype=src.dtype)
    return out.index_add_(0, seg, src)
def _pad(x, pw):
    flat = tuple(v for pair in reversed(pw) for v in pair)
    return torch.nn.functional.pad(x, flat)

kernel_name = 'standalone__gqa_block_cached__near_ridge'

def setup_inputs():

    _w = (lambda a: (lambda t: t.to(torch.bfloat16) if t.is_floating_point() else t)(torch.as_tensor(a)))
    B, Sq, D = 8, 192, 640
    Hq, Hkv, Sk, Dh = 32, 32, 1024, 192
    assert Hq % Hkv == 0, (Hq, Hkv)
    return {
        "x": _w((lambda *s: torch.randn(*s, dtype=torch.bfloat16) * 0.8)(B, Sq, D)),
        "k_cache": _w((lambda *s: torch.randn(*s, dtype=torch.bfloat16) * 0.8)(B, Hkv, Sk, Dh)),
        "v_cache": _w((lambda *s: torch.randn(*s, dtype=torch.bfloat16) * 0.05)(B, Hkv, Sk, Dh)),
        "wq": _w((lambda *s: torch.randn(*s, dtype=torch.bfloat16) * 0.8)(D, Hq * Dh) * (D ** -0.5)),
        "wo": _w((lambda *s: torch.randn(*s, dtype=torch.bfloat16) * 0.05)(Hq * Dh, D) * ((Hq * Dh) ** -0.5)),
    }

def reference(x, k_cache, v_cache, wq, wo):
    B, Sq, D = x.shape
    Hq, Dh = 32, 192
    Hkv = k_cache.shape[1]
    rep = Hq // Hkv
    q = (lambda x, *d: x.permute(*d))((x @ wq).reshape(B, Sq, Hq, Dh), 0, 2, 1, 3)
    k = (lambda x, n, axis: torch.repeat_interleave(x, n, dim=axis))(k_cache, rep, axis=1)
    v = (lambda x, n, axis: torch.repeat_interleave(x, n, dim=axis))(v_cache, rep, axis=1)
    scores = torch.einsum("bhqd,bhkd->bhqk", q, k) * (Dh ** -0.5)
    p = _softmax(scores, axis=-1)
    o = torch.einsum("bhqk,bhkd->bhqd", p, v)
    return (lambda x, *d: x.permute(*d))(o, 0, 2, 1, 3).reshape(B, Sq, Hq * Dh) @ wo
```

```python
HEADER_COMMENT = """; Kernarg layout for this problem (64 bytes, ptrs only, base s[0:1]):
"""

X_BYTES = 8 * 192 * 640 * 2
KV_BYTES = 8 * 32 * 1024 * 192 * 2
WQ_BYTES = 640 * 6144 * 2
WO_BYTES = 6144 * 640 * 2
OUT_BYTES = 8 * 192 * 640 * 2
WS_BYTES = 402653184
STAMP_OFF = 380 * 1024 * 1024


class Asm:
    def __init__(self):
        self.lines = []
        self.nlabel = 0

    def __call__(self, s=""):
        for l in s.split("\n"):
            self.lines.append("    " + l.strip() if l.strip() and not l.strip().endswith(":") else l.strip())

    def c(self, s):
        self.lines.append("    ; " + s)

    def label(self, name):
        self.lines.append(name + ":")

    def newlabel(self, base="L"):
        self.nlabel += 1
        return "%s_%d" % (base, self.nlabel)

    def text(self):
        return "\n".join(self.lines) + "\n"


def vr(a, n=1):
    return "v%d" % a if n == 1 else "v[%d:%d]" % (a, a + n - 1)


def sr(a, n=1):
    return "s%d" % a if n == 1 else "s[%d:%d]" % (a, a + n - 1)


def ar(a, n=1):
    return "a%d" % a if n == 1 else "a[%d:%d]" % (a, a + n - 1)


def kernel_begin(name):
    return (".globl %s\n.p2align 8\n.type %s,@function\n%s:\n" % (name, name, name))


def kernel_desc(name, vgpr=256, sgpr=102, accum=256):
    return (""".amdhsa_kernel %s
  .amdhsa_next_free_vgpr %d
  .amdhsa_next_free_sgpr %d
  .amdhsa_accum_offset %d
  .amdhsa_group_segment_fixed_size 0
  .amdhsa_kernarg_size 64
  .amdhsa_user_sgpr_count 2
  .amdhsa_user_sgpr_kernarg_segment_ptr 1
  .amdhsa_system_sgpr_workgroup_id_x 1
.end_amdhsa_kernel
""" % (name, vgpr, sgpr, accum))


def make_file(launch_lines, kernels):
    s = HEADER_COMMENT
    for l in launch_lines:
        s += l + "\n"
    s += '.amdgcn_target "amdgcn-amd-amdhsa--gfx950"\n.text\n'
    for name, body, vg, sg, ac in kernels:
        s += kernel_begin(name) + body
    s += '.section .rodata,"a"\n'
    for name, body, vg, sg, ac in kernels:
        s += ".p2align 6\n" + kernel_desc(name, vg, sg, ac)
    return s


def srd(a, d, base, nbytes):
    a("s_mov_b32 s%d, s%d" % (d, base))
    a("s_and_b32 s%d, s%d, 0xffff" % (d + 1, base + 1))
    a("s_mov_b32 s%d, 0x%x" % (d + 2, nbytes))
    a("s_mov_b32 s%d, 0x20000" % (d + 3))
```

```python
import math
import struct
from asmlib import *
from ir import *

SLOT = 24576
RING = SLOT * 6
SPARE = RING
LDS_BYTES = 163840
UNIT = 393216
NF = 8
DIST = 7
MFMA = "v_mfma_f32_16x16x32_bf16"

S_W = 3
SRD_X, SRD_KV, SRD_WQ, SRD_WS = 8, 12, 20, 24
S_B, S_H = 34, 35
S_D0 = 36
S_DW = 37
S_KVOFF = 38
S_SOFF = 39
S_SOFF2 = 40
S_CNT = 41
S_T = 42
S_TMP = 43
S_SCALE = 44
S_RD = 46
S_R = 47
S_ST = 62

KA = [1, 2]
VA = [3, 4, 5, 6]
LS = [7, 8, 9]
T = [10, 11, 12, 13, 14, 15]
O = 16
SA, SB, NM, P = 160, 184, 208, 220
DKV = 244
DW, DX = 160, 166
XB = 184
WA = [3, 4, 5, 6]
XA = [1, 2]
A0 = 256
Q = A0
F = A0 + 72
LA = F + 4 * NF
ONES = LA + 12


def f2u(x):
    return struct.unpack("<I", struct.pack("<f", x))[0]


class Opt:
    stamps = False
    cyc = False
    nstamps = 32
    nt_kv = True
    nt_x = False
    nt_w = False
    o_flags = ""
    msum = False
    e1 = 13
    warm = False


def stamp(p, o):
    if not o.stamps:
        return
    p("%s s[60:61]" % ("s_memtime" if o.cyc else "s_memrealtime"))
    p.lgkm(0)
    p("v_mov_b32 v250, s60")
    p("v_mov_b32 v251, s61")
    p("ds_write_b64 v252, v[250:251]")
    p("v_add_u32 v252, 8, v252")


def fb(i):
    return F + 4 * (i % NF)


def dma_groups(o, kind, second):
    if kind == "x":
        srd_, vo, fl = SRD_X, DX, " nt" if o.nt_x else ""
    elif kind == "w":
        srd_, vo, fl = SRD_WQ, DW, " nt" if o.nt_w else ""
    else:
        srd_, vo, fl = SRD_KV, DKV, " nt" if o.nt_kv else ""
    so = S_KVOFF if kind == "kv" else (S_SOFF2 if second else S_SOFF)
    base = SLOT if second else 0
    g = []
    for jj in range(6):
        pre = []
        if jj in (0, 4):
            pre = ["s_add_u32 m0, s%d, %d" % (S_D0, base + (4096 if jj == 4 else 0))]
        g.append((pre, "buffer_load_dwordx4 v%d, s[%d:%d], s%d offen offset:%d%s lds" % (
            vo + jj, srd_, srd_ + 3, so, (jj % 4) * 1024, fl)))
    return g


def ring_adv():
    return ["s_mov_b32 s%d, s%d" % (S_D0, S_R),
            "s_add_u32 s%d, s%d, %d" % (S_R, S_R, 2 * SLOT),
            "s_cmp_ge_u32 s%d, %d" % (S_R, RING),
            "s_cselect_b32 s%d, s%d, s%d" % (S_R, S_DW, S_R),
            "s_sub_u32 s%d, s%d, s%d" % (S_RD, S_R, S_D0)]


def addr_adv():
    return ["v_add_u32 v%d, s%d, v%d" % (a, S_RD, a) for a in KA + VA]


def k_read(i, buf, base):
    s, kb = i >> 1, i & 1
    return ["ds_read_b128 %s, v%d offset:%d" % (vr(fb(buf), 4), KA[s & 1], base + (s >> 1) * 128 + kb * 6144)]


def v_read(mb, buf, base):
    f = fb(buf)
    off = base + (mb >> 2) * 128
    return ["ds_read_b64_tr_b16 %s, v%d offset:%d" % (vr(f, 2), VA[mb & 3], off),
            "ds_read_b64_tr_b16 %s, v%d offset:%d" % (vr(f + 2, 2), VA[mb & 3], off + 16 * 384)]


def att_read(i, base):
    return k_read(i, i, base) if i < 12 else v_read(i - 12, i, base)


def w_read(i):
    ks, mb = i // 12, i % 12
    f = fb(i)
    a = WA[(mb & 1) + 2 * ((mb >> 1) & 1)]
    off = (mb >> 2) * 128 + ks * 32 * 384
    return ["ds_read_b64_tr_b16 %s, v%d offset:%d" % (vr(f, 2), a, off),
            "ds_read_b64_tr_b16 %s, v%d offset:%d" % (vr(f + 2, 2), a, off + 4 * 384)]


def x_read(ks, nb):
    return "ds_read_b128 %s, v%d offset:%d" % (vr(XB + (ks * 3 + nb) * 4, 4), XA[ks], nb * 2048)


def Sreg(S, nb, kb):
    return S + (nb * 2 + kb) * 4


def Oreg(mb, nb):
    return O + (mb * 3 + nb) * 4


def Qreg(s, nb):
    return Q + (s * 3 + nb) * 4


def place_reads(sc, g, reads, g0=0):
    for k, r in enumerate(reads):
        sc.put(3 * (g - g0) + 2 * k, r)


def dma_stream(o, kind, second):
    out = []
    for pre, ld in dma_groups(o, kind, second):
        out += pre + [ld]
    if kind == "kv":
        out.append("s_add_u32 s%d, s%d, 12288" % (S_KVOFF, S_KVOFF))
    elif kind == "w":
        out.append("s_add_u32 s%d, s%d, %d" % (S_SOFF, S_SOFF, 64 * 12288))
    else:
        out.append("s_add_u32 s%d, s%d, 128" % (S_SOFF2, S_SOFF2))
    return out


def barrier_block(o, vmn):
    def f(p):
        p.lgkm(0)
        p.vm(vmn)
        p("s_barrier")
        stamp(p, o)
    return f


def qstep(p, o, kinds, nxt):
    mf = []
    for i in range(24):
        ks, mb = i // 12, i % 12
        for nb in range(3):
            d = vr(Oreg(mb, nb), 4)
            mf.append("%s %s, %s, %s, %s" % (MFMA, d, vr(fb(i), 4), vr(XB + (ks * 3 + nb) * 4, 4), d))
    sc = Sched(mf)
    for g in range(0, 24, 2):
        regs = R(fb(g), 4) + R(fb(g + 1), 4)
        if g == 0:
            regs += R(XB, 12)
        if g == 12:
            regs += R(XB + 12, 12)
        sc.wait_before(3 * g, regs)
    for g in range(24 - DIST):
        place_reads(sc, g, w_read(g + DIST))
    for nb in range(3):
        sc.put(3 * (2 * nb + 2) + 1, x_read(1, nb))
    gb = 18
    sc.fill(dma_stream(o, kinds[0], False) + dma_stream(o, kinds[1], True), 0, 3 * 13 - 1)
    sc.fill(ring_adv(), 3 * 13, 3 * 17 - 1)
    if nxt == "w":
        sc.put(3 * gb + 2, barrier_block(o, 12), 3)
        post = [x_read(0, nb) for nb in range(3)]
        early = [0, 0, 0]
        for k in range(DIST):
            post += w_read(k)
            early += [3 * (17 + k)] * 2
        sc.fill(post, 3 * gb + 3, 71, early=early)
        sc.fill(addr_adv(), 3 * 17, 3 * gb + 1)
    sc.emit(p)
    return sc


def qpack(p, o):
    tmp = SA
    k = 0
    for s in range(6):
        for nb in range(3):
            A = Oreg(2 * s, nb)
            Bk = Oreg(2 * s + 1, nb)
            for x in (A, A + 2, Bk, Bk + 2):
                p("v_pk_mul_f32 %s, %s, s[%d:%d]" % (vr(x, 2), vr(x, 2), S_SCALE, S_SCALE + 1))
        for nb in range(3):
            A = Oreg(2 * s, nb)
            Bk = Oreg(2 * s + 1, nb)
            f = tmp + 12 * (s % 2) + 4 * nb
            p("v_cvt_pk_bf16_f32 v%d, v%d, v%d" % (f, A, A + 1))
            p("v_cvt_pk_bf16_f32 v%d, v%d, v%d" % (f + 1, A + 2, A + 3))
            p("v_cvt_pk_bf16_f32 v%d, v%d, v%d" % (f + 2, Bk, Bk + 1))
            p("v_cvt_pk_bf16_f32 v%d, v%d, v%d" % (f + 3, Bk + 2, Bk + 3))
        for nb in range(3):
            f = tmp + 12 * (s % 2) + 4 * nb
            p("v_permlane16_swap_b32 v%d, v%d" % (f, f + 2))
            p("v_permlane16_swap_b32 v%d, v%d" % (f + 1, f + 3))
        for nb in range(3):
            f = tmp + 12 * (s % 2) + 4 * nb
            for e in range(4):
                p("v_accvgpr_write_b32 %s, v%d" % (vr(Qreg(s, nb) + e), f + e))


def exp_order(S):
    return [Sreg(S, nb, kb) + e for nb in range(3) for kb in range(2) for e in range(4)]


def iteration(p, o, parity, do_qk=True, nxt="full", issue=True):
    Scur, Snext = (SA, SB) if parity == 0 else (SB, SA)
    base = parity * SLOT
    g0 = 0 if do_qk else 12
    mf = []
    for g in range(g0, 24):
        for nb in range(3):
            if g < 12:
                s, kb = g >> 1, g & 1
                d = vr(Sreg(Snext, nb, kb), 4)
                c = d if s > 0 else vr(NM + 4 * nb, 4)
                mf.append("%s %s, %s, %s, %s" % (MFMA, d, vr(fb(g - g0), 4), vr(Qreg(s, nb), 4), c))
            else:
                d = vr(Oreg(g - 12, nb), 4)
                mf.append("%s %s, %s, %s, %s" % (MFMA, d, vr(fb(g - g0), 4), vr(P + 4 * nb, 4), d))
    if o.msum:
        for nb in range(3):
            d = vr(LA + 4 * nb, 4)
            mf.append("%s %s, %s, %s, %s" % (MFMA, d, vr(ONES, 4), vr(P + 4 * nb, 4), d))
    sc = Sched(mf)
    last = len(mf) - 1
    G = lambda g: 3 * (g - g0)
    gb = 18
    bar = nxt is not None and parity == 1
    for g in range(g0, 24, 2):
        if bar and g > gb:
            continue
        sc.wait_before(G(g), R(fb(g - g0), 4) + R(fb(g - g0 + 1), 4))
    for g in range(g0, 24 - DIST):
        i = g + DIST
        rd = k_read(i, i - g0, base) if i < 12 else v_read(i - 12, i - g0, base)
        place_reads(sc, g, rd, g0)
    if nxt is not None:
        if parity == 0:
            for g in range(24 - DIST, 24):
                k = g + DIST - 24
                rd = k_read(k, k, SLOT) if nxt == "full" else v_read(k, k, SLOT)
                place_reads(sc, g, rd, g0)
        else:
            sc.put(G(gb) + 2, barrier_block(o, 12), 3)
            for k, gap in enumerate((G(19), G(19), G(19) + 2, G(20), G(21), G(22), G(23))):
                assert gap >= G(17 + k)
                sc.put(gap, k_read(k, k, 0)[0])
            for k, gap in enumerate((G(17), G(17), G(17) + 2, G(18), G(18), G(18) + 1)):
                sc.put(gap, addr_adv()[k])
    ec = exp_order(Scur)
    en = exp_order(Snext)
    ex = lambda x: "v_exp_f32 v%d, v%d" % (x, x)
    cv = lambda nb, k: "v_cvt_pk_bf16_f32 v%d, v%d, v%d" % (P + 4 * nb + k, ec[8 * nb + 2 * k], ec[8 * nb + 2 * k + 1])
    cvts = [cv(nb, k) for nb in range(3) for k in range(4)]
    adds = []
    if not o.msum:
        adds = ["v_add_f32 v%d, v%d, v%d" % (LS[k // 8], LS[k // 8], ec[k]) for k in range(24)]
    if do_qk:
        sc.fill([ex(x) for x in ec[o.e1:]], 0, G(11) - 1, cost=2)
        sc.fill([ex(x) for x in en[:o.e1]], G(12) + 1, last, cost=2)
        epos = lambda k: sc.pos[ex(ec[k])] + 1 if k >= o.e1 else 0
        sc.fill(cvts, 0, G(12) - 2, early=[epos(2 * k + 1) for k in range(12)])
    else:
        for x in ec[o.e1:]:
            p(ex(x))
        for t in cvts:
            p(t)
        epos = lambda k: 0
    if issue:
        st = dma_stream(o, "kv", parity == 1)
        if parity == 1:
            sc.fill(st + ring_adv(), 0, G(17) - 1)
        else:
            sc.fill(st, 0, last)
    elif bar:
        sc.fill(ring_adv(), 0, G(17) - 1)
    sc.fill(adds, 0, last, early=[epos(k) for k in range(len(adds))])
    sc.emit(p)
    return sc


def first_scores(p, o):
    p("v_add_u32 v%d, %d, v%d" % (T[0], SPARE - 2 * SLOT, KA[0]))
    p("v_add_u32 v%d, %d, v%d" % (T[1], SPARE - 2 * SLOT, KA[1]))

    def rd(i):
        s, kb = i >> 1, i & 1
        return "ds_read_b128 %s, v%d offset:%d" % (vr(fb(i), 4), T[s & 1], (s >> 1) * 128 + kb * 6144)
    return rd


def attention(p, o):
    rd = first_scores(p, o)
    for i in range(NF):
        p(rd(i))
    qpack(p, o)
    mf = []
    for g in range(12):
        s, kb = g >> 1, g & 1
        for nb in range(3):
            d = vr(Sreg(SA, nb, kb), 4)
            mf.append("%s %s, %s, %s, %s" % (MFMA, d, vr(fb(g), 4), vr(Qreg(s, nb), 4), d if s > 0 else "0"))
    sc = Sched(mf)
    for g in range(12 - NF):
        sc.put(3 * g + 2, rd(g + NF))
    z = ["v_mov_b32 v%d, 0" % (O + i) for i in range(144)]
    sc.fill(z[:66], 0, 35)
    sc.emit(p)
    for t in z[66:]:
        p(t)
    for l in LS:
        p("v_mov_b32 v%d, 0" % l)
    if o.msum:
        for i in range(12):
            p("v_accvgpr_write_b32 %s, 0" % vr(LA + i))
        p("v_mov_b32 v%d, 0x3f803f80" % T[0])
        for i in range(4):
            p("v_accvgpr_write_b32 %s, v%d" % (vr(ONES + i), T[0]))
    barrier_block(o, 12)(p)
    for k in range(DIST):
        for l in k_read(k, k, 0):
            p(l)
    for nb in range(3):
        S = Sreg(SA, nb, 0)
        m = T[nb]
        p("v_max3_f32 v%d, v%d, v%d, v%d" % (m, S, S + 1, S + 2))
        p("v_max3_f32 v%d, v%d, v%d, v%d" % (m, m, S + 3, S + 4))
        p("v_max3_f32 v%d, v%d, v%d, v%d" % (m, m, S + 5, S + 6))
        p("v_max_f32 v%d, v%d, v%d" % (m, m, S + 7))
    for sw in ("v_permlane32_swap_b32", "v_permlane16_swap_b32"):
        for nb in range(3):
            p("v_mov_b32 v%d, v%d" % (T[3 + nb], T[nb]))
        for nb in range(3):
            p("%s v%d, v%d" % (sw, T[nb], T[3 + nb]))
        for nb in range(3):
            p("v_max_f32 v%d, v%d, v%d" % (T[nb], T[nb], T[3 + nb]))
    for nb in range(3):
        for e in range(4):
            p("v_sub_f32 v%d, 0, v%d" % (NM + 4 * nb + e, T[nb]))
        for e in range(8):
            x = Sreg(SA, nb, 0) + e
            p("v_sub_f32 v%d, v%d, v%d" % (x, x, T[nb]))
    for x in exp_order(SA)[:o.e1]:
        p("v_exp_f32 v%d, v%d" % (x, x))
    p("s_mov_b32 s%d, 15" % S_CNT)
    info = []

    def body(q):
        info.append(iteration(q, o, 0).over())
        info.append(iteration(q, o, 1).over())

    def tail(q):
        q("s_sub_u32 s%d, s%d, 1" % (S_CNT, S_CNT))
        q("s_cmp_lg_u32 s%d, 0" % S_CNT)
        q("s_cbranch_scc1 L_att_loop")

    loop(p, "L_att_loop", body, tail)
    iteration(p, o, 0, nxt="pv", issue=False)
    iteration(p, o, 1, do_qk=False, nxt=None, issue=False)
    p.info = info


def epilogue(p, o):
    if o.msum:
        for nb in range(3):
            p("v_accvgpr_read_b32 v%d, %s" % (LS[nb], vr(LA + 4 * nb)))
    else:
        for sw in ("v_permlane32_swap_b32", "v_permlane16_swap_b32"):
            for nb in range(3):
                p("v_mov_b32 v%d, v%d" % (T[nb], LS[nb]))
            for nb in range(3):
                p("%s v%d, v%d" % (sw, LS[nb], T[nb]))
            for nb in range(3):
                p("v_add_f32 v%d, v%d, v%d" % (LS[nb], LS[nb], T[nb]))
    RC = [NM, NM + 2, NM + 4]
    for nb in range(3):
        p("v_rcp_f32 v%d, v%d" % (RC[nb], LS[nb]))
    for nb in range(3):
        p("v_mov_b32 v%d, v%d" % (RC[nb] + 1, RC[nb]))
    p("s_mul_i32 s%d, s%d, 12" % (S_SOFF, S_B))
    p("s_mul_i32 s%d, s%d, 3" % (S_TMP, S_W))
    p("s_add_u32 s%d, s%d, s%d" % (S_SOFF, S_SOFF, S_TMP))
    p("s_mul_i32 s%d, s%d, 192" % (S_SOFF, S_SOFF))
    p("s_mul_i32 s%d, s%d, 6" % (S_TMP, S_H))
    p("s_add_u32 s%d, s%d, s%d" % (S_SOFF, S_SOFF, S_TMP))
    p("s_lshl_b32 s%d, s%d, 10" % (S_SOFF, S_SOFF))
    p("v_and_b32 v%d, 63, v0" % T[0])
    p("v_lshlrev_b32 v%d, 4, v%d" % (T[0], T[0]))
    p("v_add_u32 v%d, 4096, v%d" % (T[1], T[0]))
    k = 0
    for nb in range(3):
        for s in range(6):
            A, Bk = Oreg(2 * s, nb), Oreg(2 * s + 1, nb)
            f = SA + 4 * (k % 12)
            k += 1
            for x in (A, A + 2, Bk, Bk + 2):
                p("v_pk_mul_f32 %s, %s, %s" % (vr(x, 2), vr(x, 2), vr(RC[nb], 2)))
            p("v_cvt_pk_bf16_f32 v%d, v%d, v%d" % (f, A, A + 1))
            p("v_cvt_pk_bf16_f32 v%d, v%d, v%d" % (f + 1, A + 2, A + 3))
            p("v_cvt_pk_bf16_f32 v%d, v%d, v%d" % (f + 2, Bk, Bk + 1))
            p("v_cvt_pk_bf16_f32 v%d, v%d, v%d" % (f + 3, Bk + 2, Bk + 3))
            p("buffer_store_dwordx4 %s, v%d, s[%d:%d], s%d offen offset:%d%s" % (
                vr(f, 4), T[0] if s < 4 else T[1], SRD_WS, SRD_WS + 3, S_SOFF, (s % 4) * 1024, o.o_flags))
        if nb < 2:
            p("s_add_u32 s%d, s%d, %d" % (S_SOFF, S_SOFF, 192 * 1024))


def mk_srd(p, d, lo, hi, off_reg, nbytes, sub_off=False):
    p("s_add_u32 s%d, s%d, s%d" % (d, lo, off_reg))
    p("s_addc_u32 s%d, s%d, 0" % (d + 1, hi))
    p("s_and_b32 s%d, s%d, 0xffff" % (d + 1, d + 1))
    if sub_off:
        p("s_sub_u32 s%d, 0x%x, s%d" % (d + 2, nbytes, off_reg))
    else:
        p("s_mov_b32 s%d, 0x%x" % (d + 2, nbytes))
    p("s_mov_b32 s%d, 0x20000" % (d + 3))


def prologue(p, o, endlabel):
    p("s_cmp_ge_u32 s2, 256")
    p("s_cbranch_scc1 %s" % endlabel)
    p("s_load_dwordx4 s[4:7], s[0:1], 0")
    p("s_load_dwordx4 s[28:31], s[0:1], 16")
    p("s_load_dwordx2 s[32:33], s[0:1], 56")
    p("v_lshrrev_b32 v1, 6, v0")
    p("v_and_b32 v12, 63, v0")
    p("v_readfirstlane_b32 s%d, v1" % S_W)
    p("s_and_b32 s%d, s2, 7" % S_H)
    p("s_lshl_b32 s%d, s%d, 2" % (S_H, S_H))
    p("s_bfe_u32 s%d, s2, 0x20003" % S_TMP)
    p("s_add_u32 s%d, s%d, s%d" % (S_H, S_H, S_TMP))
    p("s_lshr_b32 s%d, s2, 5" % S_B)
    p("s_mul_i32 s%d, s%d, 6144" % (S_DW, S_W))
    p("s_mov_b32 s%d, s%d" % (S_D0, S_DW))
    p("s_mul_i32 s50, s%d, %d" % (S_W, 16 * 12288))
    p("s_mul_i32 s51, s%d, %d" % (S_W, 48 * 1280))
    for jj in range(3):
        row, pp = 20 + 2 * jj, 21 + 2 * jj
        p("v_add_u32 v13, %d, v12" % (64 * jj))
        p("v_mul_u32_u24 v%d, 2731, v13" % row)
        p("v_lshrrev_b32 v%d, 16, v%d" % (row, row))
        p("v_mul_u32_u24 v15, 24, v%d" % row)
        p("v_sub_u32 v%d, v13, v15" % pp)
        p("v_bfe_u32 v15, v%d, 1, 1" % row)
        p("v_xor_b32 v15, v15, v%d" % pp)
        p("v_lshlrev_b32 v15, 4, v15")
        p("v_mul_u32_u24 v14, 12288, v%d" % row)
        p("v_add3_u32 v15, v15, v14, s50")
        p("v_subrev_u32 v%d, %d, v15" % (DW + jj, (jj % 4) * 1024))
        p("v_xor_b32 v15, 64, v15")
        p("v_add_u32 v%d, %d, v15" % (DW + jj + 3, 8 * 12288 - ((jj + 3) % 4) * 1024))
    p("v_lshrrev_b32 v14, 3, v12")
    p("v_lshrrev_b32 v15, 4, v12")
    p("v_and_b32 v13, 7, v12")
    p("v_xor_b32 v15, v15, v13")
    p("v_lshlrev_b32 v15, 4, v15")
    p("v_mul_u32_u24 v14, 1280, v14")
    p("v_add3_u32 v15, v15, v14, s51")
    p("v_xor_b32 v14, 64, v15")
    for jj in range(6):
        p("v_add_u32 v%d, %d, v%d" % (DX + jj, jj * 10240 - (jj % 4) * 1024, 15 if jj % 2 == 0 else 14))
    p("s_mul_i32 s52, s%d, 384" % S_H)
    p("s_mul_i32 s53, s%d, 245760" % S_B)
    p("s_mov_b32 s%d, 0" % S_SOFF)
    p("s_mov_b32 s%d, 0" % S_SOFF2)
    p.lgkm(0)
    mk_srd(p, SRD_WQ, 30, 31, 52, WQ_BYTES, True)
    mk_srd(p, SRD_X, 4, 5, 53, 245760)

    def issue_wx():
        for l in dma_stream(o, "w", False) + dma_stream(o, "x", True):
            p(l)
        p("s_add_u32 s%d, s%d, %d" % (S_D0, S_D0, 2 * SLOT))

    issue_wx()
    issue_wx()
    p("s_cmp_lt_u32 s%d, 2" % S_W)
    p("s_cselect_b32 s54, s6, s28")
    p("s_cselect_b32 s55, s7, s29")
    p("s_cselect_b32 s56, -1, 0")
    p("s_cselect_b32 s57, 0, -1")
    p("s_cselect_b32 s58, 64, 0")
    p("s_cselect_b32 s%d, 12288, 0" % S_KVOFF)
    p("s_lshl_b32 s%d, s%d, 5" % (S_TMP, S_B))
    p("s_add_u32 s%d, s%d, s%d" % (S_TMP, S_TMP, S_H))
    p("s_mul_i32 s%d, s%d, %d" % (S_TMP, S_TMP, UNIT))
    mk_srd(p, SRD_KV, 54, 55, S_TMP, UNIT)
    p("s_and_b32 s59, s%d, 1" % S_W)
    p("s_mul_i32 s59, s59, 6144")
    for jj in range(3):
        row, pp = 20 + 2 * jj, 21 + 2 * jj
        p("v_lshrrev_b32 v15, 1, v%d" % row)
        p("v_and_b32 v15, s56, v15")
        p("v_and_b32 v14, 2, v%d" % row)
        p("v_lshlrev_b32 v14, 1, v14")
        p("v_bfe_u32 v13, v%d, 2, 1" % row)
        p("v_lshl_or_b32 v14, v13, 1, v14")
        p("v_and_b32 v14, s57, v14")
        p("v_or_b32 v15, v15, v14")
        p("v_xor_b32 v15, v15, v%d" % pp)
        p("v_lshlrev_b32 v15, 4, v15")
        p("v_mul_u32_u24 v14, 384, v%d" % row)
        p("v_add3_u32 v15, v15, v14, s59")
        p("v_subrev_u32 v%d, %d, v15" % (DKV + jj, (jj % 4) * 1024))
        p("v_xor_b32 v15, s58, v15")
        p("v_add_u32 v%d, %d, v15" % (DKV + jj + 3, 8 * 384 - ((jj + 3) % 4) * 1024))
    p("s_cmp_ge_u32 s%d, 2" % S_W)
    p("s_cbranch_scc1 L_skip_k0")
    for jj in range(6):
        if jj in (0, 4):
            p("s_add_u32 m0, s%d, %d" % (S_DW, SPARE + (4096 if jj == 4 else 0)))
        p("buffer_load_dwordx4 v%d, s[%d:%d], 0 offen offset:%d%s lds" % (
            DKV + jj, SRD_KV, SRD_KV + 3, (jj % 4) * 1024, " nt" if o.nt_kv else ""))
    p.label("L_skip_k0")
    p("s_mov_b32 s%d, s32" % SRD_WS)
    p("s_and_b32 s%d, s33, 0xffff" % (SRD_WS + 1))
    p("s_mov_b32 s%d, 0x%x" % (SRD_WS + 2, WS_BYTES))
    p("s_mov_b32 s%d, 0x20000" % (SRD_WS + 3))
    sc_ = f2u(192 ** -0.5 * math.log2(math.e))
    p("s_mov_b32 s%d, 0x%x" % (S_SCALE, sc_))
    p("s_mov_b32 s%d, 0x%x" % (S_SCALE + 1, sc_))
    p("s_mov_b32 s%d, s%d" % (S_R, S_DW))
    if o.stamps:
        p("s_lshl_b32 s%d, s%d, 9" % (S_TMP, S_W))
        p("s_add_u32 s%d, s%d, %d" % (S_TMP, S_TMP, SPARE + 12288))
        p("v_mov_b32 v252, s%d" % S_TMP)
        stamp(p, o)


def qproj(p, o):
    p("v_lshrrev_b32 v13, 4, v12")
    p("v_bfe_u32 v14, v12, 2, 2")
    p("v_lshl_add_u32 v15, v13, 3, v14")
    p("v_mul_u32_u24 v15, 384, v15")
    p("v_lshrrev_b32 v14, 1, v14")
    p("v_and_b32 v13, 1, v13")
    p("v_lshl_or_b32 v14, v13, 2, v14")
    p("v_and_b32 v13, 2, v12")
    p("v_xor_b32 v14, v14, v13")
    p("v_lshl_add_u32 v15, v14, 4, v15")
    p("v_and_b32 v13, 1, v12")
    p("v_lshl_add_u32 v%d, v13, 3, v15" % WA[0])
    for i, x in ((1, 16), (2, 64), (3, 80)):
        p("v_xor_b32 v%d, %d, v%d" % (WA[i], x, WA[0]))
    p("v_and_b32 v13, 15, v12")
    p("v_lshrrev_b32 v14, 1, v13")
    p("v_lshrrev_b32 v15, 4, v12")
    p("v_xor_b32 v14, v14, v15")
    p("v_lshlrev_b32 v14, 4, v14")
    p("v_lshl_add_u32 v14, v13, 7, v14")
    p("s_add_u32 s%d, s%d, %d" % (S_TMP, S_DW, SLOT))
    p("v_add_u32 v%d, s%d, v14" % (XA[0], S_TMP))
    p("v_xor_b32 v%d, 64, v%d" % (XA[1], XA[0]))
    for i in range(144):
        p("v_mov_b32 v%d, 0" % (O + i))
    p.vm(12)
    p("s_barrier")
    stamp(p, o)
    for nb in range(3):
        p(x_read(0, nb))
    for k in range(DIST):
        for l in w_read(k):
            p(l)
    p("s_mov_b32 s%d, 8" % S_CNT)

    def tail(q):
        q("s_sub_u32 s%d, s%d, 1" % (S_CNT, S_CNT))
        q("s_cmp_lg_u32 s%d, 0" % S_CNT)
        q("s_cbranch_scc1 L_q_loop")

    loop(p, "L_q_loop", lambda q: qstep(q, o, ("w", "x"), "w"), tail)
    qstep(p, o, ("kv", "kv"), "w")
    qstep(p, o, ("kv", "kv"), "k0")
    p("v_and_b32 v12, 63, v0")
    p("v_and_b32 v13, 15, v12")
    p("v_lshrrev_b32 v14, 1, v13")
    p("v_lshrrev_b32 v15, 4, v12")
    p("v_xor_b32 v14, v14, v15")
    p("v_mul_u32_u24 v13, 384, v13")
    p("v_lshl_add_u32 v13, v14, 4, v13")
    p("v_add_u32 v%d, %d, v13" % (KA[0], 2 * SLOT))
    p("v_xor_b32 v%d, 64, v%d" % (KA[1], KA[0]))
    p("v_lshrrev_b32 v13, 2, v12")
    p("v_mul_u32_u24 v15, 384, v13")
    p("v_and_b32 v14, 2, v13")
    p("v_lshlrev_b32 v14, 1, v14")
    p("v_bfe_u32 v13, v13, 2, 1")
    p("v_lshl_or_b32 v14, v13, 1, v14")
    p("v_bfe_u32 v13, v12, 1, 1")
    p("v_xor_b32 v14, v14, v13")
    p("v_lshl_add_u32 v15, v14, 4, v15")
    p("v_and_b32 v13, 1, v12")
    p("v_lshl_add_u32 v15, v13, 3, v15")
    p("v_add_u32 v%d, %d, v15" % (VA[0], 2 * SLOT + 12288))
    for i in (1, 2, 3):
        p("v_xor_b32 v%d, %d, v%d" % (VA[i], 32 * i, VA[0]))


def dump_stamps(p, o):
    if not o.stamps:
        return
    p.vm(0)
    stamp(p, o)
    p.lgkm(0)
    p("s_cmp_lg_u32 s%d, 0" % S_W)
    p("s_cbranch_scc1 L_nodump")
    p("v_and_b32 v250, 63, v0")
    p("v_lshlrev_b32 v250, 3, v250")
    p("v_add_u32 v251, %d, v250" % (SPARE + 12288))
    p("ds_read_b64 v[252:253], v251")
    p("s_mul_i32 s%d, s2, %d" % (S_ST, o.nstamps * 8))
    p("s_add_u32 s%d, s%d, 0x%x" % (S_ST, S_ST, STAMP_OFF))
    p("v_cmp_gt_u32 vcc, %d, v250" % (o.nstamps * 8))
    p("s_and_saveexec_b64 s[60:61], vcc")
    p("buffer_store_dwordx2 v[252:253], v250, s[%d:%d], s%d offen" % (SRD_WS, SRD_WS + 3, S_ST))
    p.label("L_nodump")


def gen(o, endlabel="L_k1_end"):
    p = Prog()
    prologue(p, o, endlabel)
    qproj(p, o)
    attention(p, o)
    stamp(p, o)
    epilogue(p, o)
    dump_stamps(p, o)
    p.label(endlabel)
    p("s_endpgm")
    return p


if __name__ == "__main__":
    KN = "standalone__gqa_block_cached__near_ridge_kernel"

    def build(name, **kw):
        o = Opt()
        o.nstamps = 29
        for k, v in kw.items():
            setattr(o, k, v)
        p = gen(o)
        open(name + ".s", "w").write(make_file(
            ["; @launch grid=(256,1,1) block=(256,1,1) lds=%d" % LDS_BYTES], [(KN, p.text(), 512, 102, 256)]))
        print(name, p.stat, "nopstates", p.nopstates, "over", p.info[-2:])

    build("s1")
    build("s1_st", stamps=True)
    build("s1_cyc", stamps=True, cyc=True)
    build("s1_ms", msum=True, e1=13)
    build("s1_ms_cyc", msum=True, e1=13, stamps=True, cyc=True)
    build("s1_ms_st", msum=True, e1=13, stamps=True)
```

```python
import re


def R(a, n=1):
    return list(range(a, a + n))


def vr(a, n=1):
    c = "v"
    if a >= 256:
        c = "a"
        a -= 256
    return "%s%d" % (c, a) if n == 1 else "%s[%d:%d]" % (c, a, a + n - 1)


class Ins:
    __slots__ = ("text", "kind", "w", "r", "a", "b", "c", "sw", "sr")

    def __init__(self, text, kind, w=(), r=(), a=(), b=(), c=(), sw=(), sr=()):
        self.text = text
        self.kind = kind
        self.w = set(w)
        self.r = set(r)
        self.a = set(a)
        self.b = set(b)
        self.c = set(c)
        self.sw = set(sw)
        self.sr = set(sr)


_VREG = re.compile(r"\b([va])(\d+)\b|\b([va])\[(\d+):(\d+)\]")
_SREG = re.compile(r"\bs(\d+)\b|\bs\[(\d+):(\d+)\]|\b(vcc|m0|exec)\b")


def _regs(s):
    out = []
    for m in _VREG.finditer(s):
        if m.group(1) is not None:
            out.append(int(m.group(2)) + (256 if m.group(1) == "a" else 0))
        else:
            b = 256 if m.group(3) == "a" else 0
            out += list(range(b + int(m.group(4)), b + int(m.group(5)) + 1))
    return out


def _sregs(s):
    out = []
    for m in _SREG.finditer(s):
        if m.group(1) is not None:
            out.append("s" + m.group(1))
        elif m.group(2) is not None:
            out += ["s%d" % i for i in range(int(m.group(2)), int(m.group(3)) + 1)]
        else:
            out.append(m.group(4))
    return out


TRANS = ("v_exp_f32", "v_log_f32", "v_rcp_f32", "v_rsq_f32", "v_sqrt_f32")


def parse(text):
    t = text.strip()
    op, _, rest = t.partition(" ")
    ops = [o.strip() for o in rest.split(",")] if rest else []
    if op.startswith("v_mfma"):
        kind = "mfma32" if "32x32" in op else "mfma16"
        d, a, b, c = ops[0], ops[1], ops[2], ops[3]
        return Ins(t, kind, w=_regs(d), r=_regs(a) + _regs(b) + _regs(c), a=_regs(a), b=_regs(b), c=_regs(c))
    if op.startswith("ds_read"):
        return Ins(t, "ds_read", w=_regs(ops[0]), r=_regs(ops[1]))
    if op.startswith("ds_write") or op.startswith("ds_add") :
        return Ins(t, "ds_write", r=_regs(rest))
    if op.startswith("buffer_load") or op.startswith("global_load"):
        if " lds" in t:
            return Ins(t, "dma", r=_regs(ops[0]), sr=_sregs(",".join(ops[1:])) + ["m0"])
        return Ins(t, "vload", w=_regs(ops[0]), r=_regs(",".join(ops[1:])), sr=_sregs(",".join(ops[1:])))
    if op.startswith("buffer_store") or op.startswith("global_store") or op.startswith("buffer_atomic"):
        i = Ins(t, "vstore", r=_regs(rest), sr=_sregs(rest))
        if "x4" in op or "x3" in op:
            i.a = set(_regs(ops[0]))
        if op.startswith("buffer_atomic") and " sc0" in t:
            i.w = set(_regs(ops[0]))
        return i
    if op.startswith("v_permlane"):
        rs = _regs(rest)
        return Ins(t, "permlane", w=rs, r=rs)
    if op.startswith("v_readfirstlane") or op.startswith("v_readlane"):
        return Ins(t, "readlane", r=_regs(",".join(ops[1:])), sw=_sregs(ops[0]), sr=_sregs(",".join(ops[1:])))
    if op.startswith("v_cmp"):
        return Ins(t, "valu", r=_regs(",".join(ops[1:])), sw=_sregs(ops[0]), sr=_sregs(",".join(ops[1:])))
    if op.startswith("v_"):
        base = op.replace("_e32", "").replace("_e64", "")
        kind = "trans" if base in TRANS else "valu"
        w = _regs(ops[0])
        r = _regs(",".join(ops[1:]))
        if op.startswith("v_fmac") or op.startswith("v_pk_fmac") or op.startswith("v_dot2c"):
            r += w
        if "_dpp" in op or "row_" in t or "quad_perm" in t:
            kind = "dpp"
            r += w
        sw = []
        if op.startswith("v_add_co") or op.startswith("v_addc_co") or op.startswith("v_sub_co"):
            sw = _sregs(ops[1])
        return Ins(t, kind, w=w, r=r, sw=sw, sr=_sregs(",".join(ops[1:])))
    if op == "s_waitcnt":
        return Ins(t, "wait")
    if op == "s_nop":
        return Ins(t, "nop")
    if op == "s_barrier":
        return Ins(t, "barrier")
    if op.startswith("s_cbranch") or op == "s_branch" or op == "s_endpgm":
        return Ins(t, "branch")
    if op.startswith("s_load") or op.startswith("s_memtime") or op.startswith("s_memrealtime"):
        return Ins(t, "smem", sw=_sregs(ops[0]))
    if op.startswith("s_cmp") or op.startswith("s_setprio") or op.startswith("s_sleep"):
        return Ins(t, "salu", sr=_sregs(rest))
    if op.startswith("s_"):
        return Ins(t, "salu", sw=_sregs(ops[0]) if ops else [], sr=_sregs(",".join(ops[1:])))
    if op.startswith("buffer_inv") or op.startswith("buffer_wbl2"):
        return Ins(t, "other")
    raise ValueError("cannot parse: " + t)


VALU_KINDS = ("valu", "trans", "dpp", "permlane", "readlane")
MF = ("mfma16", "mfma32")


def need_states(p, c):
    n = 0
    pv = p.kind in VALU_KINDS
    if pv and p.w:
        if c.kind in MF and (p.w & c.r):
            n = max(n, 2)
        if c.kind in ("permlane", "dpp") and (p.w & c.r):
            n = max(n, 2)
        if c.kind == "readlane" and (p.w & c.r):
            n = max(n, 1)
        if p.kind == "trans" and c.kind in VALU_KINDS + MF and (p.w & (c.r | c.w)):
            n = max(n, 1)
    if pv and p.sw:
        if c.kind in VALU_KINDS and (p.sw & c.sr):
            n = max(n, 4 if c.kind == "readlane" else 2)
        if c.kind in ("dma", "vload", "vstore") and (p.sw & c.sr):
            n = max(n, 5)
        if c.kind in ("salu", "branch") and (p.sw & (c.sr | {"vcc"} if c.kind == "branch" else c.sr)):
            n = max(n, 1)
    if p.kind == "salu" and "m0" in p.sw and c.kind == "dma":
        n = max(n, 1)
    if p.kind in MF:
        big = p.kind == "mfma32"
        if c.kind in MF:
            if p.w & (c.a | c.b):
                n = max(n, 12 if big else 8)
            if p.w & c.c:
                if not (p.w == c.c and p.kind == c.kind):
                    n = max(n, 10 if big else 6)
            elif p.w & c.w:
                n = max(n, 10 if big else 6)
        else:
            if p.w & (c.r | c.w):
                n = max(n, 12 if big else 8)
            if c.kind in VALU_KINDS and (p.c & c.w):
                n = max(n, 7 if big else 3)
            if c.kind in ("ds_read", "vload") and (p.c & c.w):
                n = max(n, 7 if big else 3)
    if p.kind == "vstore" and p.a and (p.a & c.w):
        n = max(n, 2)
    return n


class Prog:
    def __init__(self):
        self.out = []
        self.hist = []
        self.pend = []
        self.stat = {}
        self.nopstates = 0
        self.vmq = []
        self.tag = None

    def label(self, name):
        self.out.append(name + ":")

    def c(self, s):
        self.out.append("    ; " + s)

    def raw(self, s):
        self.out.append("    " + s)

    def _push(self, ins, states=1):
        self.out.append("    " + ins.text)
        self.hist.append((ins, states))
        if len(self.hist) > 40:
            self.hist.pop(0)
        self.stat[ins.kind] = self.stat.get(ins.kind, 0) + 1

    def nop(self, n):
        while n > 0:
            k = min(n, 16)
            self._push(Ins("s_nop %d" % (k - 1), "nop"), k)
            self.nopstates += k
            n -= k

    def lgkm(self, n):
        self._push(Ins("s_waitcnt lgkmcnt(%d)" % n, "wait"))
        if n == 0:
            self.pend = []
        else:
            self.pend = self.pend[-n:] if len(self.pend) > n else self.pend

    def need(self, regs):
        regs = set(regs)
        last = -1
        for i, rs in enumerate(self.pend):
            if rs & regs:
                last = i
        if last >= 0:
            self.lgkm(min(len(self.pend) - 1 - last, 15))

    def vm(self, n):
        assert 0 <= n <= 63
        self._push(Ins("s_waitcnt vmcnt(%d)" % n, "wait"))

    def tagged(self, tag, text):
        self.tag = tag
        self(text)
        self.tag = None

    def vmwait(self, *tags):
        last = -1
        for i, t in enumerate(self.vmq):
            if t in tags:
                last = i
        if last < 0:
            return
        n = len(self.vmq) - 1 - last
        self.vm(min(n, 63))
        self.vmq = self.vmq[last + 1:]

    def __call__(self, text):
        for line in text.split("\n"):
            line = line.strip()
            if line:
                self.emit(parse(line))

    def emit(self, ins):
        if ins.kind == "wait":
            m = re.search(r"lgkmcnt\((\d+)\)", ins.text)
            if m:
                n = int(m.group(1))
                self.pend = [] if n == 0 else (self.pend[-n:] if len(self.pend) > n else self.pend)
            self._push(ins)
            return
        if ins.kind == "nop":
            k = int(ins.text.split()[1]) + 1
            self._push(ins, k)
            return
        touch = ins.r | ins.w
        last = -1
        for i, regs in enumerate(self.pend):
            if regs & touch:
                last = i
        if last >= 0:
            n = len(self.pend) - 1 - last
            self.lgkm(min(n, 15))
        need = 0
        dist = 0
        for p, st in reversed(self.hist):
            k = need_states(p, ins) - dist
            if k > need:
                need = k
            dist += st
            if dist >= 20:
                break
        if need > 0:
            self.nop(need)
        if ins.kind in ("ds_read", "ds_write"):
            if len(self.pend) >= 15:
                self.lgkm(14)
            self.pend.append(set(ins.w))
        if ins.kind == "smem":
            self.pend.append(set())
        if ins.kind in ("dma", "vload", "vstore"):
            self.vmq.append(self.tag)
        self._push(ins)

    def snapshot(self):
        return ([set(s) for s in self.pend], list(self.hist))

    def restore(self, snap):
        self.pend = [set(s) for s in snap[0]]
        self.hist = list(snap[1])

    def text(self):
        return "\n".join(self.out) + "\n"


def loop(p, label, body, tail):
    entry = p.snapshot()
    t1 = Prog(); t1.restore(entry); body(t1); tail(t1)
    t2 = Prog(); t2.restore(t1.snapshot()); body(t2); tail(t2)
    assert [sorted(s) for s in t1.pend] == [sorted(s) for s in t2.pend]
    if t1.out != t2.out:
        e = [sorted(s) for s in entry[0]]
        s = [sorted(x) for x in t1.pend]
        assert e == s[len(s) - len(e):] or e == s, ("loop entry pending mismatch", e, s)
        p.nop(16)
    p.label(label)
    p.restore(t1.snapshot())
    body(p)
    tail(p)


class Sched:
    def __init__(self, mfmas, cap=2):
        self.m = list(mfmas)
        n = len(self.m)
        self.n = n
        self.gap = [[] for _ in range(n)]
        self.used = [0] * n
        self.cap = cap
        self.pre = [None] * n
        self.pos = {}

    def put(self, i, item, cost=1):
        self.gap[i].append(item)
        self.used[i] += cost
        if isinstance(item, str):
            self.pos[item] = i
        return i

    fixed = put

    def wait_before(self, i, regs):
        self.pre[i] = list(regs)
        self.used[(i - 1) % self.n] += 1

    def fill(self, items, lo, hi, cost=1, early=None):
        items = list(items)
        if not items:
            return
        slots = []
        for g in range(lo, hi + 1):
            slots += [g] * max(0, (self.cap - self.used[g]) // cost)
        if len(slots) < len(items):
            need = len(items) - len(slots)
            load = {g: self.used[g] + slots.count(g) * cost for g in range(lo, hi + 1)}
            span = hi - lo + 1
            extra = []
            for k in range(need):
                c = lo + int((k + 0.5) * span / need)
                cand = sorted(range(max(lo, c - 2), min(hi, c + 2) + 1), key=lambda g: (load[g], abs(g - c)))
                g = cand[0]
                load[g] += cost
                extra.append(g)
            slots = sorted(slots + extra)
        n, m = len(items), len(slots)
        j = -1
        for k, it in enumerate(items):
            want = int((k + 0.5) * m / n)
            j = max(j + 1, want)
            if early is not None:
                while j < m and slots[j] < early[k]:
                    j += 1
            j = min(j, m - 1)
            g = slots[j]
            if early is not None and g < early[k]:
                g = early[k]
            assert g <= hi, (it, g, hi)
            self.put(g, it, cost)

    def emit(self, p):
        for i, m in enumerate(self.m):
            if self.pre[i]:
                p.need(self.pre[i])
            p(m)
            for it in self.gap[i]:
                if callable(it):
                    it(p)
                else:
                    p(it)

    def over(self):
        return sum(max(0, u - self.cap) for u in self.used)
```

```python
from asmlib import *
from ir import *
import gen_s as S
from gen_s import MFMA, NF, DIST, SLOT, RING, fb, SRD_WS, S_W, S_B, S_H, S_TMP, S_SOFF, S_SOFF2, stamp

SRD_WO = 16
PART_OFF = 32 * 1024 * 1024
ACC = 16
DWO = 232
OA = [1, 2]
S_WOOFF = 48
S_WD = 49


def acc(mb, nb):
    return ACC + (mb * 3 + nb) * 4


def bfrag_regs():
    regs = []
    pool = [256 + 4 * k for k in range(18)] + [256 + 104 + 4 * k for k in range(38)] + [136 + 4 * k for k in range(16)]
    return pool


def wo_voffsets(p):
    for jj in range(5):
        p("v_add_u32 v13, %d, v12" % (64 * jj))
        p("v_mul_u32_u24 v14, 3277, v13")
        p("v_lshrrev_b32 v14, 16, v14")
        p("v_mul_u32_u24 v15, 20, v14")
        p("v_sub_u32 v13, v13, v15")
        p("v_bfe_u32 v15, v14, 2, 1")
        p("v_xor_b32 v13, v13, v15")
        p("v_lshlrev_b32 v13, 4, v13")
        p("v_mul_u32_u24 v14, 1280, v14")
        p("v_add_u32 v13, v13, v14")
        p("v_subrev_u32 v%d, %d, v13" % (DWO + jj, (jj % 4) * 1024))
        p("v_add_u32 v%d, %d, v13" % (DWO + jj + 5, 16 * 1280 - ((jj + 5) % 4) * 1024))


def wo_dma(pair, fl=""):
    out = []
    for jj in range(10):
        if jj % 4 == 0:
            out.append("s_add_u32 m0, s%d, %d" % (S_WD, pair * 2 * SLOT + jj * 1024))
        out.append("buffer_load_dwordx4 v%d, s[%d:%d], s%d offen offset:%d%s lds" % (
            DWO + jj, SRD_WO, SRD_WO + 3, S_WOOFF, (jj % 4) * 1024, fl))
    return out


def wo_addr(p, pair):
    p("v_lshrrev_b32 v13, 2, v12")
    p("v_mul_u32_u24 v15, 320, v13")
    p("v_bfe_u32 v13, v12, 4, 1")
    p("v_and_b32 v14, 2, v12")
    p("v_xor_b32 v14, v14, v13")
    p("v_lshl_add_u32 v15, v14, 4, v15")
    p("v_and_b32 v13, 1, v12")
    p("v_lshl_add_u32 v15, v13, 3, v15")
    p("v_add_u32 v%d, %d, v15" % (OA[0], pair * 2 * SLOT))
    p("v_xor_b32 v%d, 16, v%d" % (OA[1], OA[0]))


def wo_read(i):
    ks, mb = i // 10, i % 10
    f = fb(i)
    off = (mb >> 1) * 64 + ks * 32 * 320
    return ["ds_read_b64_tr_b16 %s, v%d offset:%d" % (vr(f, 2), OA[mb & 1], off),
            "ds_read_b64_tr_b16 %s, v%d offset:%d" % (vr(f + 2, 2), OA[mb & 1], off + 16 * 320)]


def oproj_main(p, o, pair0, breg, btag, extra):
    for k in range(DIST):
        for l in wo_read(k):
            p(l)
    for t in range(6):
        mf = []
        for i in range(40):
            ks, mb = i // 10, i % 10
            for nb in range(3):
                d = vr(acc(mb, nb), 4)
                c = d if (t > 0 or ks > 0) else "0"
                mf.append("%s %s, %s, %s, %s" % (MFMA, d, vr(fb(i), 4), vr(breg[(4 * t + ks) * 3 + nb], 4), c))
        sc = Sched(mf)
        gb = 34
        bar = t < 5
        for g in range(0, 40, 2):
            if bar and g > gb:
                continue
            sc.wait_before(3 * g, R(fb(g), 4) + R(fb(g + 1), 4))
        for g in range(40 - DIST):
            S.place_reads(sc, g, wo_read(g + DIST))
        for ks in range(4):
            tag = btag[4 * t + ks]
            if tag is not None:
                if ks == 0:
                    tagf = tag
                    if callable(tag):
                        tag(p)
                    else:
                        p.vmwait(tag)
                else:
                    sc.put(30 * ks - 1, tag if callable(tag) else (lambda q, tag=tag: q.vmwait(tag)))
        if bar:
            nxt = (pair0 + t + 1) % 3
            cur = (pair0 + t) % 3
            delta = (nxt - cur) * 2 * SLOT

            def barrier(q, t=t):
                q.lgkm(0)
                q.vmwait("wo%d" % (t + 1))
                q("s_barrier")
                stamp(q, o)
            sc.put(3 * gb + 2, barrier, 3)
            post, early = [], []
            for k in range(DIST):
                post += wo_read(k)
                early += [3 * (33 + k)] * 2
            sc.fill(post, 3 * gb + 3, 119, early=early)
            sc.fill(["v_add_u32 v%d, %d, v%d" % (a, delta, a) for a in OA], 3 * 33, 3 * gb + 1)
        items = []
        if 1 <= t <= 3:
            for l in wo_dma((pair0 + t + 2) % 3, o.wo_flags):
                items.append((lambda q, l=l, t=t: q.tagged("wo%d" % (t + 2), l)))
            items.append("s_add_u32 s%d, s%d, %d" % (S_WOOFF, S_WOOFF, 128 * 1280))
        items += extra[t]
        sc.fill(items, 0, 3 * 30)
        sc.emit(p)


def store_partials(p, o, s_g, s_i):
    p("s_lshl_b32 s%d, s%d, 3" % (S_SOFF, s_g))
    p("s_add_u32 s%d, s%d, s%d" % (S_SOFF, S_SOFF, S_B))
    p("s_lshl_b32 s%d, s%d, 2" % (S_SOFF, S_SOFF))
    p("s_add_u32 s%d, s%d, s%d" % (S_SOFF, S_SOFF, s_i))
    p("s_lshl_b32 s%d, s%d, 2" % (S_SOFF, S_SOFF))
    p("s_add_u32 s%d, s%d, s%d" % (S_SOFF, S_SOFF, S_W))
    p("s_mul_i32 s%d, s%d, %d" % (S_SOFF, S_SOFF, 15 * 1024))
    p("s_add_u32 s%d, s%d, 0x%x" % (S_SOFF, S_SOFF, PART_OFF))
    p("v_and_b32 v10, 63, v0")
    p("v_lshlrev_b32 v10, 4, v10")
    k = 0
    for s in range(5):
        fs = []
        for nb in range(3):
            A, Bk = acc(2 * s, nb), acc(2 * s + 1, nb)
            f = 136 + 4 * (s * 3 + nb)
            fs.append(f)
            p("v_cvt_pk_bf16_f32 v%d, v%d, v%d" % (f, A, A + 1))
            p("v_cvt_pk_bf16_f32 v%d, v%d, v%d" % (f + 1, A + 2, A + 3))
            p("v_cvt_pk_bf16_f32 v%d, v%d, v%d" % (f + 2, Bk, Bk + 1))
            p("v_cvt_pk_bf16_f32 v%d, v%d, v%d" % (f + 3, Bk + 2, Bk + 3))
        for f in fs:
            p("v_permlane16_swap_b32 v%d, v%d" % (f, f + 2))
            p("v_permlane16_swap_b32 v%d, v%d" % (f + 1, f + 3))
        for nb, f in enumerate(fs):
            p("buffer_store_dwordx4 %s, v10, s[%d:%d], s%d offen offset:%d%s" % (
                vr(f, 4), SRD_WS, SRD_WS + 3, S_SOFF, nb * 1024, o.part_flags))
        if s < 4:
            p("s_add_u32 s%d, s%d, 3072" % (S_SOFF, S_SOFF))


def gen_k2(o):
    p = Prog()
    S_G, S_I = 50, 51
    p("s_cmp_ge_u32 s2, 256")
    p("s_cbranch_scc1 L_k2_end")
    p("s_load_dwordx2 s[4:5], s[0:1], 32")
    p("s_load_dwordx2 s[32:33], s[0:1], 56")
    p("v_lshrrev_b32 v1, 6, v0")
    p("v_and_b32 v12, 63, v0")
    p("v_readfirstlane_b32 s%d, v1" % S_W)
    p("s_and_b32 s%d, s2, 7" % S_G)
    p("s_bfe_u32 s%d, s2, 0x20003" % S_I)
    p("s_lshr_b32 s%d, s2, 5" % S_B)
    p("s_mul_i32 s%d, s%d, 10240" % (S_WD, S_W))
    wo_voffsets(p)
    p("s_mul_i32 s52, s%d, %d" % (S_G, 768 * 1280))
    p("s_mul_i32 s%d, s%d, 320" % (S_TMP, S_I))
    p("s_add_u32 s52, s52, s%d" % S_TMP)
    p("s_mul_i32 s%d, s%d, %d" % (S_WOOFF, S_W, 32 * 1280))
    p("s_mul_i32 s%d, s%d, 12" % (S_SOFF, S_B))
    p("s_mul_i32 s%d, s%d, 3" % (S_TMP, S_W))
    p("s_add_u32 s%d, s%d, s%d" % (S_SOFF, S_SOFF, S_TMP))
    p("s_mul_i32 s%d, s%d, 192" % (S_SOFF, S_SOFF))
    p("s_mul_i32 s%d, s%d, 24" % (S_TMP, S_G))
    p("s_add_u32 s%d, s%d, s%d" % (S_SOFF, S_SOFF, S_TMP))
    p("s_lshl_b32 s%d, s%d, 10" % (S_SOFF, S_SOFF))
    p("v_lshlrev_b32 v7, 4, v12")
    p("v_add_u32 v8, %d, v7" % (192 * 1024))
    p("v_add_u32 v9, %d, v7" % (2 * 192 * 1024))
    p.lgkm(0)
    S.mk_srd(p, SRD_WO, 4, 5, 52, WO_BYTES, True)
    p("s_mov_b32 s%d, s32" % SRD_WS)
    p("s_and_b32 s%d, s33, 0xffff" % (SRD_WS + 1))
    p("s_mov_b32 s%d, 0x%x" % (SRD_WS + 2, WS_BYTES))
    p("s_mov_b32 s%d, 0x20000" % (SRD_WS + 3))
    breg = bfrag_regs()

    def bloads(t):
        out = []
        for ks in range(4):
            for nb in range(3):
                l = "buffer_load_dwordx4 %s, v%d, s[%d:%d], s%d offen offset:%d" % (
                    vr(breg[(4 * t + ks) * 3 + nb], 4), 7 + nb, SRD_WS, SRD_WS + 3, S_SOFF, ks * 1024)
                out.append((lambda q, l=l, t=t: q.tagged("b%d" % t, l)))
        out.append("s_add_u32 s%d, s%d, 4096" % (S_SOFF, S_SOFF))
        return out

    def run(items):
        for it in items:
            it(p) if callable(it) else p(it)

    for t in range(3):
        for l in wo_dma(t, o.wo_flags):
            p.tagged("wo%d" % t, l)
        p("s_add_u32 s%d, s%d, %d" % (S_WOOFF, S_WOOFF, 128 * 1280))
        if t < 2:
            run(bloads(t))
    wo_addr(p, 0)
    p.vmwait("wo0")
    p("s_barrier")
    btag = [None] * 24
    for t in range(6):
        btag[4 * t] = "b%d" % t
    extra = [bloads(t + 2) if t + 2 < 6 else [] for t in range(6)]
    oproj_main(p, o, 0, breg, btag, extra)
    store_partials(p, o, S_G, S_I)
    p.label("L_k2_end")
    p("s_endpgm")
    return p


def gen_k3(o):
    p = Prog()
    p("s_cmp_ge_u32 s2, 480")
    p("s_cbranch_scc1 L_k3_end")
    p("s_load_dwordx2 s[4:5], s[0:1], 40")
    p("s_load_dwordx2 s[6:7], s[0:1], 56")
    p("v_lshrrev_b32 v1, 6, v0")
    p("v_and_b32 v2, 63, v0")
    p("v_readfirstlane_b32 s3, v1")
    p("s_lshl_b32 s8, s2, 2")
    p("s_add_u32 s8, s8, s3")
    p("s_lshl_b32 s9, s8, 10")
    p("s_add_u32 s9, s9, 0x%x" % PART_OFF)
    p("v_lshlrev_b32 v3, 4, v2")
    p.lgkm(0)
    a = Asm(); srd(a, 12, 4, OUT_BYTES); srd(a, 16, 6, WS_BYTES)
    for l in a.lines:
        p(l)
    for g in range(8):
        p("buffer_load_dwordx4 %s, v3, s[16:19], s9 offen" % vr(8 + 4 * g, 4))
        if g < 7:
            p("s_add_u32 s9, s9, %d" % (1920 * 1024))
    p("s_mul_i32 s10, s8, 4370")
    p("s_lshr_b32 s10, s10, 16")
    p("s_mul_i32 s11, s10, 15")
    p("s_sub_u32 s11, s8, s11")
    p("s_mul_i32 s20, s11, 86")
    p("s_lshr_b32 s20, s20, 8")
    p("s_mul_i32 s21, s20, 3")
    p("s_sub_u32 s21, s11, s21")
    p("s_and_b32 s22, s10, 3")
    p("s_bfe_u32 s23, s10, 0x20002")
    p("s_lshr_b32 s24, s10, 4")
    p("s_mul_i32 s24, s24, 192")
    p("s_mul_i32 s22, s22, 48")
    p("s_add_u32 s24, s24, s22")
    p("s_lshl_b32 s21, s21, 4")
    p("s_add_u32 s24, s24, s21")
    p("s_mul_i32 s24, s24, 1280")
    p("s_mul_i32 s23, s23, 320")
    p("s_add_u32 s24, s24, s23")
    p("s_lshl_b32 s20, s20, 6")
    p("s_add_u32 s24, s24, s20")
    p("v_and_b32 v4, 15, v2")
    p("v_mul_u32_u24 v4, 1280, v4")
    p("v_lshrrev_b32 v5, 4, v2")
    p("v_lshl_add_u32 v4, v5, 4, v4")
    p("s_mov_b32 s25, 0xffff0000")
    for g in range(8):
        p.vm(7 - g)
        for e in range(4):
            x = 8 + 4 * g + e
            if g == 0:
                p("v_lshlrev_b32 v%d, 16, v%d" % (40 + 2 * e, x))
                p("v_and_b32 v%d, s25, v%d" % (41 + 2 * e, x))
            else:
                p("v_lshlrev_b32 v6, 16, v%d" % x)
                p("v_and_b32 v7, s25, v%d" % x)
                p("v_add_f32 v%d, v%d, v6" % (40 + 2 * e, 40 + 2 * e))
                p("v_add_f32 v%d, v%d, v7" % (41 + 2 * e, 41 + 2 * e))
    for e in range(4):
        p("v_cvt_pk_bf16_f32 v%d, v%d, v%d" % (48 + e, 40 + 2 * e, 41 + 2 * e))
    p("buffer_store_dwordx4 v[48:51], v4, s[12:15], s24 offen")
    p.label("L_k3_end")
    p("s_endpgm")
    return p


def build3(name, **kw):
    o = S.Opt()
    o.nstamps = 29
    o.wo_flags = ""
    o.part_flags = ""
    for k, v in kw.items():
        setattr(o, k, v)
    p1 = S.gen(o)
    o.stamps = False
    p2 = gen_k2(o)
    p3 = gen_k3(o)
    KN = "standalone__gqa_block_cached__near_ridge_kernel"
    txt = make_file(["; @launch kernel=%s grid=(256,1,1) block=(256,1,1) lds=%d" % (KN, S.LDS_BYTES),
                     "; @launch kernel=oproj_kernel grid=(256,1,1) block=(256,1,1) lds=%d" % RING,
                     "; @launch kernel=reduce_kernel grid=(480,1,1) block=(256,1,1) lds=0"],
                    [(KN, p1.text(), 512, 102, 256), ("oproj_kernel", p2.text(), 512, 102, 256),
                     ("reduce_kernel", p3.text(), 56, 32, 56)])
    open(name + ".s", "w").write(txt)
    print(name, p2.stat, p2.nopstates)


if __name__ == "__main__":
    for F in range(1920):
        assert (F * 4370) >> 16 == F // 15
    for L in range(320):
        assert (L * 3277) >> 16 == L // 20
    for j in range(15):
        assert (j * 86) >> 8 == j // 3
    build3("f3")
    build3("f3_def", nt_kv=False)
```
